```python
import torch

def _softmax(x, axis=-1):
    return torch.softmax(x, dim=axis)
def _gelu(x):
    return torch.nn.functional.gelu(x, approximate="tanh")
def _silu(x):
    return torch.nn.functional.silu(x)
def _sigmoid(x):
    return torch.sigmoid(x)
def _layernorm(x, axis=-1, eps=1e-5):
    m = x.mean(dim=axis, keepdim=True)
    v = x.var(dim=axis, keepdim=True, unbiased=False)
    return (x - m) / torch.sqrt(v + eps)
def _scatter_add(tgt, idx, src, axis=0):
    return tgt.clone().index_add_(axis, idx, src)
def _segment_sum(src, seg, n):
    out = torch.zeros((n,) + src.shape[1:], dtype=src.dtype)
    return out.index_add_(0, seg, src)
def _pad(x, pw):
    flat = tuple(v for pair in reversed(pw) for v in pair)
    return torch.nn.functional.pad(x, flat)

kernel_name = 'standalone__grn__sampling'

def setup_inputs():

    _w = (lambda a: (lambda t: t.to(torch.bfloat16) if t.is_floating_point() else t)(torch.as_tensor(a)))
    B, S, D = 1024, 8, 1024
    return {
        "x": _w((lambda *s: torch.randn(*s, dtype=torch.bfloat16) * 0.05)(B, S, D)),
        "g": _w((lambda *s: torch.randn(*s, dtype=torch.bfloat16) * 0.4)(D) * 0.1),
        "b": _w((lambda *s: torch.randn(*s, dtype=torch.bfloat16) * 0.1)(D) * 0.1),
    }

def reference(x, g, b):
    gx = torch.sqrt((x * x).sum(axis=-2, keepdims=True))
    nx = gx / (gx.mean(axis=-1, keepdims=True) + 1e-6)
    return g * (x * nx) + b + x
```

```python
import re, sys

def stampify(asm, nwaves_per_wg_log2):
    def rep(m):
        n = int(m.group(1))
        return f"    s_memrealtime s[{40+2*n}:{41+2*n}]"
    asm = re.sub(r"^\s*;@STAMP (\d)\s*$", rep, asm, flags=re.M)
    fin = """
    s_waitcnt vmcnt(0)
    s_memrealtime s[52:53]
    s_load_dwordx2 s[56:57], s[0:1], 40
    s_getreg_b32 s54, hwreg(HW_REG_XCC_ID)
    s_getreg_b32 s55, hwreg(HW_REG_HW_ID)
    s_lshl_b32 s54, s54, 28
    s_and_b32 s55, s55, 0x0fffffff
    s_or_b32 s54, s54, s55
    v_readfirstlane_b32 s58, v0
    s_lshr_b32 s58, s58, 6
    s_lshl_b32 s59, s2, %d
    s_add_u32 s58, s58, s59
    s_lshl_b32 s58, s58, 5
    s_waitcnt lgkmcnt(0)
    s_mov_b64 exec, 1
    v_mov_b32 v8, s40
    v_mov_b32 v9, s42
    v_mov_b32 v10, s44
    v_mov_b32 v11, s46
    v_mov_b32 v12, s48
    v_mov_b32 v13, s50
    v_mov_b32 v14, s52
    v_mov_b32 v15, s54
    v_mov_b32 v16, s58
    global_store_dwordx4 v16, v[8:11], s[56:57]
    global_store_dwordx4 v16, v[12:15], s[56:57] offset:16
""" % nwaves_per_wg_log2
    asm = asm.replace("L_end:", fin + "L_end:", 1)
    asm = re.sub(r"\.amdhsa_next_free_sgpr \d+", ".amdhsa_next_free_sgpr 64", asm)
    return asm

def kernel_b(nwaves, kind, a, b, K=100):
    iters = nwaves // 64
    L = []
    w = L.append
    w(".text")
    w(".globl diagb_kernel")
    w(".p2align 8")
    w(".type diagb_kernel,@function")
    w("diagb_kernel:")
    w("    s_memrealtime s[20:21]")
    w("    s_load_dwordx2 s[4:5], s[0:1], 40")
    w("    s_load_dwordx2 s[6:7], s[0:1], 32")
    w("    s_cmp_ge_u32 s2, 1")
    w("    s_cbranch_scc1 LB_end")
    w("    v_lshlrev_b32 v1, 5, v0")
    w("    v_mov_b32 v20, 0")
    w("    v_mov_b32 v21, -1")
    w("    v_mov_b32 v22, 0")
    w("    v_mov_b32 v23, -1")
    w("    v_mov_b32 v24, 0")
    w("    v_mov_b32 v25, 0")
    w("    v_mov_b32 v26, -1")
    w("    v_mov_b32 v27, 0")
    w(f"    s_mov_b32 s8, {iters}")
    w("    s_waitcnt lgkmcnt(0)")
    w("LB_loop:")
    w("    global_load_dwordx4 v[8:11], v1, s[4:5]")
    w("    global_load_dwordx4 v[12:15], v1, s[4:5] offset:16")
    w("    v_add_u32 v1, 2048, v1")
    w("    s_waitcnt vmcnt(0)")
    w(f"    v_sub_u32 v2, s20, v{8+a}")
    w(f"    v_sub_u32 v3, s20, v{8+b}")
    w(f"    v_sub_u32 v4, v{8+a}, v{8+b}")
    w("    v_max_u32 v20, v20, v2")
    w("    v_min_u32 v21, v21, v2")
    w("    v_max_u32 v22, v22, v3")
    w("    v_min_u32 v23, v23, v3")
    w("    v_add_u32 v24, v24, v4")
    w("    v_max_u32 v25, v25, v4")
    w("    v_min_u32 v26, v26, v4")
    w("    v_add_u32 v27, v27, v2")
    w("    s_sub_u32 s8, s8, 1")
    w("    s_cmp_lg_u32 s8, 0")
    w("    s_cbranch_scc1 LB_loop")
    w("    v_lshlrev_b32 v5, 2, v0")
    ops = {20: "v_max_u32", 21: "v_min_u32", 22: "v_max_u32", 23: "v_min_u32", 24: "v_add_u32", 25: "v_max_u32", 26: "v_min_u32", 27: "v_add_u32"}
    for m in (1, 2, 4, 8, 16, 32):
        w(f"    v_xor_b32 v6, {m*4}, v5")
        for r, op in ops.items():
            w(f"    ds_bpermute_b32 v7, v6, v{r}")
            w("    s_waitcnt lgkmcnt(0)")
            w(f"    {op} v{r}, v{r}, v7")
    w("    s_nop 1")
    for r in ops:
        w(f"    v_readfirstlane_b32 s{r+10}, v{r}")
    w("    s_nop 4")
    lg = nwaves.bit_length() - 1
    if kind == "span":
        w("    s_sub_u32 s9, s32, s31")
    elif kind == "first":
        w("    s_sub_u32 s9, s32, s30")
    elif kind == "mean":
        w(f"    s_lshr_b32 s9, s34, {lg}")
    elif kind == "maxd":
        w("    s_mov_b32 s9, s35")
    elif kind == "mind":
        w("    s_mov_b32 s9, s36")
    elif kind == "gap":
        w("    s_mov_b32 s9, s31")
    elif kind == "meanrel":
        w(f"    s_lshr_b32 s9, s37, {lg}")
        w("    s_sub_u32 s9, s32, s9")
    elif kind == "zero":
        w("    s_mov_b32 s9, 0")
    w("    s_min_u32 s9, s9, 5000")
    w(f"    s_mul_i32 s10, s9, {K}")
    w("    s_memrealtime s[22:23]")
    w("    s_waitcnt lgkmcnt(0)")
    w("LB_spin:")
    w("    s_memrealtime s[24:25]")
    w("    s_waitcnt lgkmcnt(0)")
    w("    s_sub_u32 s11, s24, s22")
    w("    s_cmp_lt_u32 s11, s10")
    w("    s_cbranch_scc1 LB_spin")
    w("LB_end:")
    w("    s_endpgm")
    w('.section .rodata,"a"')
    w(".p2align 6")
    w(".amdhsa_kernel diagb_kernel")
    w("  .amdhsa_next_free_vgpr 32")
    w("  .amdhsa_next_free_sgpr 48")
    w("  .amdhsa_accum_offset 32")
    w("  .amdhsa_group_segment_fixed_size 0")
    w("  .amdhsa_kernarg_size 48")
    w("  .amdhsa_user_sgpr_count 2")
    w("  .amdhsa_user_sgpr_kernarg_segment_ptr 1")
    w("  .amdhsa_system_sgpr_workgroup_id_x 1")
    w(".end_amdhsa_kernel")
    return "\n".join(L) + "\n"

def make(asm, kind, a, b, K=100):
    m = re.search(r"; @launch grid=\((\d+),1,1\) block=\((\d+),1,1\) lds=(\d+)", asm)
    g, blk, lds = int(m.group(1)), int(m.group(2)), int(m.group(3))
    wpw = blk // 64
    nw = g * wpw
    s = stampify(asm, wpw.bit_length() - 1)
    if kind is None:
        return s
    s = s.replace(m.group(0), f"; @launch kernel=standalone__grn__sampling_kernel grid=({g},1,1) block=({blk},1,1) lds={lds}\n; @launch kernel=diagb_kernel grid=(1,1,1) block=(64,1,1) lds=0")
    return s + kernel_b(nw, kind, a, b, K)

if __name__ == "__main__":
    src, out, kind = sys.argv[1], sys.argv[2], sys.argv[3]
    if kind == "none":
        open(out, "w").write(make(open(src).read(), None, 0, 0))
    else:
        a, b = int(sys.argv[4]), int(sys.argv[5])
        open(out, "w").write(make(open(src).read(), kind, a, b))
```

```python
import re, sys

def stampify(asm, nwaves_per_wg_log2):
    def rep(m):
        n = int(m.group(1))
        return f"    s_memrealtime s[{40+2*n}:{41+2*n}]"
    asm = re.sub(r"^\s*;@STAMP (\d)\s*$", rep, asm, flags=re.M)
    fin = """
    s_waitcnt vmcnt(0)
    s_memrealtime s[52:53]
    s_load_dwordx2 s[56:57], s[0:1], 40
    s_getreg_b32 s54, hwreg(HW_REG_XCC_ID)
    s_getreg_b32 s55, hwreg(HW_REG_HW_ID)
    s_lshl_b32 s54, s54, 28
    s_and_b32 s55, s55, 0x0fffffff
    s_or_b32 s54, s54, s55
    v_readfirstlane_b32 s58, v0
    s_lshr_b32 s58, s58, 6
    s_lshl_b32 s59, s2, %d
    s_add_u32 s58, s58, s59
    s_lshl_b32 s58, s58, 5
    s_waitcnt lgkmcnt(0)
    s_mov_b64 exec, 1
    v_mov_b32 v8, s40
    v_mov_b32 v9, s42
    v_mov_b32 v10, s44
    v_mov_b32 v11, s46
    v_mov_b32 v12, s48
    v_mov_b32 v13, s50
    v_mov_b32 v14, s52
    v_mov_b32 v15, s54
    v_mov_b32 v16, s58
    global_store_dwordx4 v16, v[8:11], s[56:57]
    global_store_dwordx4 v16, v[12:15], s[56:57] offset:16
""" % nwaves_per_wg_log2
    asm = asm.replace("L_end:", fin + "L_end:", 1)
    asm = re.sub(r"\.amdhsa_next_free_sgpr \d+", ".amdhsa_next_free_sgpr 64", asm)
    return asm

def kernel_b(nwaves, kind, a, b, K=100):
    iters = nwaves // 64
    L = []
    w = L.append
    w(".text")
    w(".globl diagb_kernel")
    w(".p2align 8")
    w(".type diagb_kernel,@function")
    w("diagb_kernel:")
    w("    s_memrealtime s[20:21]")
    w("    s_load_dwordx2 s[4:5], s[0:1], 40")
    w("    s_load_dwordx2 s[6:7], s[0:1], 32")
    w("    s_cmp_ge_u32 s2, 1")
    w("    s_cbranch_scc1 LB_end")
    w("    v_lshlrev_b32 v1, 5, v0")
    w("    v_mov_b32 v20, 0")
    w("    v_mov_b32 v21, -1")
    w("    v_mov_b32 v22, 0")
    w("    v_mov_b32 v23, -1")
    w("    v_mov_b32 v24, 0")
    w("    v_mov_b32 v25, 0")
    w("    v_mov_b32 v26, -1")
    w("    v_mov_b32 v27, 0")
    w(f"    s_mov_b32 s8, {iters}")
    w("    s_waitcnt lgkmcnt(0)")
    w("LB_loop:")
    w("    global_load_dwordx4 v[8:11], v1, s[4:5]")
    w("    global_load_dwordx4 v[12:15], v1, s[4:5] offset:16")
    w("    v_add_u32 v1, 2048, v1")
    w("    s_waitcnt vmcnt(0)")
    w(f"    v_sub_u32 v2, s20, v{8+a}")
    w(f"    v_sub_u32 v3, s20, v{8+b}")
    w(f"    v_sub_u32 v4, v{8+a}, v{8+b}")
    w("    v_max_u32 v20, v20, v2")
    w("    v_min_u32 v21, v21, v2")
    w("    v_max_u32 v22, v22, v3")
    w("    v_min_u32 v23, v23, v3")
    w("    v_add_u32 v24, v24, v4")
    w("    v_max_u32 v25, v25, v4")
    w("    v_min_u32 v26, v26, v4")
    w("    v_add_u32 v27, v27, v2")
    w("    s_sub_u32 s8, s8, 1")
    w("    s_cmp_lg_u32 s8, 0")
    w("    s_cbranch_scc1 LB_loop")
    w("    v_lshlrev_b32 v5, 2, v0")
    ops = {20: "v_max_u32", 21: "v_min_u32", 22: "v_max_u32", 23: "v_min_u32", 24: "v_add_u32", 25: "v_max_u32", 26: "v_min_u32", 27: "v_add_u32"}
    for m in (1, 2, 4, 8, 16, 32):
        w(f"    v_xor_b32 v6, {m*4}, v5")
        for r, op in ops.items():
            w(f"    ds_bpermute_b32 v7, v6, v{r}")
            w("    s_waitcnt lgkmcnt(0)")
            w(f"    {op} v{r}, v{r}, v7")
    w("    s_nop 1")
    for r in ops:
        w(f"    v_readfirstlane_b32 s{r+10}, v{r}")
    w("    s_nop 4")
    lg = nwaves.bit_length() - 1
    if kind == "span":
        w("    s_sub_u32 s9, s32, s31")
    elif kind == "first":
        w("    s_sub_u32 s9, s32, s30")
    elif kind == "mean":
        w(f"    s_lshr_b32 s9, s34, {lg}")
    elif kind == "maxd":
        w("    s_mov_b32 s9, s35")
    elif kind == "mind":
        w("    s_mov_b32 s9, s36")
    elif kind == "gap":
        w("    s_mov_b32 s9, s31")
    elif kind == "meanrel":
        w(f"    s_lshr_b32 s9, s37, {lg}")
        w("    s_sub_u32 s9, s32, s9")
    elif kind == "total":
        w("    s_mov_b32 s9, s32")
    elif kind == "const":
        w("    s_mov_b32 s9, 1000")
    elif kind == "zero":
        w("    s_mov_b32 s9, 0")
    w("    s_min_u32 s9, s9, 5000")
    w(f"    s_mul_i32 s10, s9, {K}")
    w("    s_memrealtime s[22:23]")
    w("    s_waitcnt lgkmcnt(0)")
    w("LB_spin:")
    w("    s_memrealtime s[24:25]")
    w("    s_waitcnt lgkmcnt(0)")
    w("    s_sub_u32 s11, s24, s22")
    w("    s_cmp_lt_u32 s11, s10")
    w("    s_cbranch_scc1 LB_spin")
    w("LB_end:")
    w("    s_endpgm")
    w('.section .rodata,"a"')
    w(".p2align 6")
    w(".amdhsa_kernel diagb_kernel")
    w("  .amdhsa_next_free_vgpr 32")
    w("  .amdhsa_next_free_sgpr 48")
    w("  .amdhsa_accum_offset 32")
    w("  .amdhsa_group_segment_fixed_size 0")
    w("  .amdhsa_kernarg_size 48")
    w("  .amdhsa_user_sgpr_count 2")
    w("  .amdhsa_user_sgpr_kernarg_segment_ptr 1")
    w("  .amdhsa_system_sgpr_workgroup_id_x 1")
    w(".end_amdhsa_kernel")
    return "\n".join(L) + "\n"

def make(asm, kind, a, b, K=100):
    m = re.search(r"; @launch grid=\((\d+),1,1\) block=\((\d+),1,1\) lds=(\d+)", asm)
    g, blk, lds = int(m.group(1)), int(m.group(2)), int(m.group(3))
    wpw = blk // 64
    nw = g * wpw
    s = stampify(asm, wpw.bit_length() - 1)
    if kind is None:
        return s
    s = s.replace(m.group(0), f"; @launch kernel=standalone__grn__sampling_kernel grid=({g},1,1) block=({blk},1,1) lds={lds}\n; @launch kernel=diagb_kernel grid=(1,1,1) block=(64,1,1) lds=0")
    return s + kernel_b(nw, kind, a, b, K)

if __name__ == "__main__":
    src, out, kind = sys.argv[1], sys.argv[2], sys.argv[3]
    if kind == "none":
        open(out, "w").write(make(open(src).read(), None, 0, 0))
    else:
        a, b = int(sys.argv[4]), int(sys.argv[5])
        open(out, "w").write(make(open(src).read(), kind, a, b))
```

```python
import re, sys

def stampify(asm, nwaves_per_wg_log2):
    def rep(m):
        n = int(m.group(1))
        return f"    s_memrealtime s[{40+2*n}:{41+2*n}]"
    asm = re.sub(r"^\s*;@STAMP (\d)\s*$", rep, asm, flags=re.M)
    fin = """
    s_waitcnt vmcnt(0)
    s_memrealtime s[52:53]
    s_load_dwordx2 s[56:57], s[0:1], 40
    s_getreg_b32 s54, hwreg(HW_REG_XCC_ID)
    s_getreg_b32 s55, hwreg(HW_REG_HW_ID)
    s_lshl_b32 s54, s54, 28
    s_and_b32 s55, s55, 0x0fffffff
    s_or_b32 s54, s54, s55
    v_readfirstlane_b32 s58, v0
    s_lshr_b32 s58, s58, 6
    s_lshl_b32 s59, s2, %d
    s_add_u32 s58, s58, s59
    s_lshl_b32 s58, s58, 5
    s_waitcnt lgkmcnt(0)
    s_mov_b64 exec, 1
    v_mov_b32 v8, s40
    v_mov_b32 v9, s42
    v_mov_b32 v10, s44
    v_mov_b32 v11, s46
    v_mov_b32 v12, s48
    v_mov_b32 v13, s50
    v_mov_b32 v14, s52
    v_mov_b32 v15, s54
    v_mov_b32 v16, s58
    global_store_dwordx4 v16, v[8:11], s[56:57]
    global_store_dwordx4 v16, v[12:15], s[56:57] offset:16
""" % nwaves_per_wg_log2
    asm = asm.replace("L_end:", fin + "L_end:", 1)
    asm = re.sub(r"\.amdhsa_next_free_sgpr \d+", ".amdhsa_next_free_sgpr 64", asm)
    return asm

def kernel_b(nwaves, kind, a, b, K=100):
    iters = nwaves // 64
    L = []
    w = L.append
    w(".text")
    w(".globl diagb_kernel")
    w(".p2align 8")
    w(".type diagb_kernel,@function")
    w("diagb_kernel:")
    w("    s_memrealtime s[20:21]")
    w("    s_load_dwordx2 s[4:5], s[0:1], 40")
    w("    s_load_dwordx2 s[6:7], s[0:1], 32")
    w("    s_cmp_ge_u32 s2, 1")
    w("    s_cbranch_scc1 LB_end")
    w("    v_lshlrev_b32 v1, 5, v0")
    w("    v_mov_b32 v20, 0")
    w("    v_mov_b32 v21, -1")
    w("    v_mov_b32 v22, 0")
    w("    v_mov_b32 v23, -1")
    w("    v_mov_b32 v24, 0")
    w("    v_mov_b32 v25, 0")
    w("    v_mov_b32 v26, -1")
    w("    v_mov_b32 v27, 0")
    w("    v_mov_b32 v28, 0")
    w(f"    s_mov_b32 s8, {iters}")
    w("    s_waitcnt lgkmcnt(0)")
    w("LB_loop:")
    w("    global_load_dwordx4 v[8:11], v1, s[4:5]")
    w("    global_load_dwordx4 v[12:15], v1, s[4:5] offset:16")
    w("    v_add_u32 v1, 2048, v1")
    w("    s_waitcnt vmcnt(0)")
    w(f"    v_sub_u32 v2, s20, v{8+a}")
    w(f"    v_sub_u32 v3, s20, v{8+b}")
    w(f"    v_sub_u32 v4, v{8+a}, v{8+b}")
    w("    v_max_u32 v20, v20, v2")
    w("    v_min_u32 v21, v21, v2")
    w("    v_max_u32 v22, v22, v3")
    w("    v_min_u32 v23, v23, v3")
    w("    v_add_u32 v24, v24, v4")
    w("    v_max_u32 v25, v25, v4")
    w("    v_min_u32 v26, v26, v4")
    w("    v_add_u32 v27, v27, v2")
    w("    v_add_u32 v28, v28, v2")
    w("    v_lshrrev_b32 v29, 28, v15")
    w("    s_sub_u32 s8, s8, 1")
    w("    s_cmp_lg_u32 s8, 0")
    w("    s_cbranch_scc1 LB_loop")
    w("    v_lshlrev_b32 v5, 2, v0")
    ops = {20: "v_max_u32", 21: "v_min_u32", 22: "v_max_u32", 23: "v_min_u32", 24: "v_add_u32", 25: "v_max_u32", 26: "v_min_u32", 27: "v_add_u32"}
    for m in (1, 2, 4, 8, 16, 32):
        w(f"    v_xor_b32 v6, {m*4}, v5")
        for r, op in ops.items():
            w(f"    ds_bpermute_b32 v7, v6, v{r}")
            w("    s_waitcnt lgkmcnt(0)")
            w(f"    {op} v{r}, v{r}, v7")
        if m in (1, 16, 32):
            w("    ds_bpermute_b32 v7, v6, v28")
            w("    s_waitcnt lgkmcnt(0)")
            w("    v_add_u32 v28, v28, v7")
    w("    s_nop 1")
    for r in ops:
        w(f"    v_readfirstlane_b32 s{r+10}, v{r}")
    w("    s_nop 4")
    lg = nwaves.bit_length() - 1
    if kind == "span":
        w("    s_sub_u32 s9, s32, s31")
    elif kind == "first":
        w("    s_sub_u32 s9, s32, s30")
    elif kind == "mean":
        w(f"    s_lshr_b32 s9, s34, {lg}")
    elif kind == "maxd":
        w("    s_mov_b32 s9, s35")
    elif kind == "mind":
        w("    s_mov_b32 s9, s36")
    elif kind == "gap":
        w("    s_mov_b32 s9, s31")
    elif kind == "meanrel":
        w(f"    s_lshr_b32 s9, s37, {lg}")
        w("    s_sub_u32 s9, s32, s9")
    elif kind == "total":
        w("    s_mov_b32 s9, s32")
    elif kind == "const":
        w("    s_mov_b32 s9, 1000")
    elif kind.startswith("cls"):
        c = int(kind[3:])
        w(f"    v_readlane_b32 s9, v28, {2*c}")
        w(f"    v_readlane_b32 s12, v29, {2*c}")
        w("    s_nop 4")
        w(f"    s_lshr_b32 s9, s9, {lg-3}")
        w("    s_sub_u32 s9, s32, s9")
        w("    s_min_u32 s9, s9, 499")
        w("    s_mul_i32 s12, s12, 500")
        w("    s_add_u32 s9, s9, s12")
    elif kind == "zero":
        w("    s_mov_b32 s9, 0")
    w("    s_min_u32 s9, s9, 5000")
    w(f"    s_mul_i32 s10, s9, {K}")
    w("    s_memrealtime s[22:23]")
    w("    s_waitcnt lgkmcnt(0)")
    w("LB_spin:")
    w("    s_memrealtime s[24:25]")
    w("    s_waitcnt lgkmcnt(0)")
    w("    s_sub_u32 s11, s24, s22")
    w("    s_cmp_lt_u32 s11, s10")
    w("    s_cbranch_scc1 LB_spin")
    w("LB_end:")
    w("    s_endpgm")
    w('.section .rodata,"a"')
    w(".p2align 6")
    w(".amdhsa_kernel diagb_kernel")
    w("  .amdhsa_next_free_vgpr 32")
    w("  .amdhsa_next_free_sgpr 48")
    w("  .amdhsa_accum_offset 32")
    w("  .amdhsa_group_segment_fixed_size 0")
    w("  .amdhsa_kernarg_size 48")
    w("  .amdhsa_user_sgpr_count 2")
    w("  .amdhsa_user_sgpr_kernarg_segment_ptr 1")
    w("  .amdhsa_system_sgpr_workgroup_id_x 1")
    w(".end_amdhsa_kernel")
    return "\n".join(L) + "\n"

def make(asm, kind, a, b, K=100):
    m = re.search(r"; @launch grid=\((\d+),1,1\) block=\((\d+),1,1\) lds=(\d+)", asm)
    g, blk, lds = int(m.group(1)), int(m.group(2)), int(m.group(3))
    wpw = blk // 64
    nw = g * wpw
    s = stampify(asm, wpw.bit_length() - 1)
    if kind is None:
        return s
    s = s.replace(m.group(0), f"; @launch kernel=standalone__grn__sampling_kernel grid=({g},1,1) block=({blk},1,1) lds={lds}\n; @launch kernel=diagb_kernel grid=(1,1,1) block=(64,1,1) lds=0")
    return s + kernel_b(nw, kind, a, b, K)

if __name__ == "__main__":
    src, out, kind = sys.argv[1], sys.argv[2], sys.argv[3]
    if kind == "none":
        open(out, "w").write(make(open(src).read(), None, 0, 0))
    else:
        a, b = int(sys.argv[4]), int(sys.argv[5])
        open(out, "w").write(make(open(src).read(), kind, a, b))
```

```python
import re, sys

def stampify(asm, nwaves_per_wg_log2):
    asm0 = asm
    def rep(m):
        n = int(m.group(1))
        if n == 0 and "L_skip" in asm0:
            return "\n".join(f"    s_memrealtime s[{40+2*k}:{41+2*k}]" for k in range(5))
        return f"    s_memrealtime s[{40+2*n}:{41+2*n}]"
    asm = re.sub(r"^\s*;@STAMP (\d)\s*$", rep, asm, flags=re.M)
    fin = """
    s_waitcnt vmcnt(0)
    s_memrealtime s[52:53]
    s_load_dwordx2 s[56:57], s[0:1], 40
    s_getreg_b32 s54, hwreg(HW_REG_XCC_ID)
    s_getreg_b32 s55, hwreg(HW_REG_HW_ID)
    s_lshl_b32 s54, s54, 28
    s_and_b32 s55, s55, 0x0fffffff
    s_or_b32 s54, s54, s55
    v_readfirstlane_b32 s58, v0
    s_lshr_b32 s58, s58, 6
    s_lshl_b32 s59, s2, %d
    s_add_u32 s58, s58, s59
    s_lshl_b32 s58, s58, 5
    s_waitcnt lgkmcnt(0)
    s_mov_b64 exec, 1
    v_mov_b32 v8, s40
    v_mov_b32 v9, s42
    v_mov_b32 v10, s44
    v_mov_b32 v11, s46
    v_mov_b32 v12, s48
    v_mov_b32 v13, s50
    v_mov_b32 v14, s52
    v_mov_b32 v15, s54
    v_mov_b32 v16, s58
    global_store_dwordx4 v16, v[8:11], s[56:57]
    global_store_dwordx4 v16, v[12:15], s[56:57] offset:16
""" % nwaves_per_wg_log2
    asm = asm.replace("L_end:", fin + "L_end:", 1)
    asm = re.sub(r"\.amdhsa_next_free_sgpr \d+", ".amdhsa_next_free_sgpr 64", asm)
    return asm

def kernel_b(nwaves, kind, a, b, K=100):
    iters = (nwaves + 63) // 64
    L = []
    w = L.append
    w(".text")
    w(".globl diagb_kernel")
    w(".p2align 8")
    w(".type diagb_kernel,@function")
    w("diagb_kernel:")
    w("    s_memrealtime s[20:21]")
    w("    s_load_dwordx2 s[4:5], s[0:1], 40")
    w("    s_load_dwordx2 s[6:7], s[0:1], 32")
    w("    s_cmp_ge_u32 s2, 1")
    w("    s_cbranch_scc1 LB_end")
    w("    v_lshlrev_b32 v1, 5, v0")
    w("    v_mov_b32 v20, 0")
    w("    v_mov_b32 v21, -1")
    w("    v_mov_b32 v22, 0")
    w("    v_mov_b32 v23, -1")
    w("    v_mov_b32 v24, 0")
    w("    v_mov_b32 v25, 0")
    w("    v_mov_b32 v26, -1")
    w("    v_mov_b32 v27, 0")
    w("    v_mov_b32 v28, 0")
    w(f"    s_mov_b32 s8, {iters}")
    w("    s_waitcnt lgkmcnt(0)")
    w("LB_loop:")
    w("    global_load_dwordx4 v[8:11], v1, s[4:5]")
    w("    global_load_dwordx4 v[12:15], v1, s[4:5] offset:16")
    w("    v_add_u32 v1, 2048, v1")
    w("    s_waitcnt vmcnt(0)")
    w(f"    v_sub_u32 v2, s20, v{8+a}")
    w(f"    v_sub_u32 v3, s20, v{8+b}")
    w(f"    v_sub_u32 v4, v{8+a}, v{8+b}")
    w("    v_max_u32 v20, v20, v2")
    w("    v_min_u32 v21, v21, v2")
    w("    v_max_u32 v22, v22, v3")
    w("    v_min_u32 v23, v23, v3")
    w("    v_add_u32 v24, v24, v4")
    w("    v_max_u32 v25, v25, v4")
    w("    v_min_u32 v26, v26, v4")
    w("    v_add_u32 v27, v27, v2")
    w("    v_add_u32 v28, v28, v2")
    w("    v_lshrrev_b32 v29, 28, v15")
    w("    s_sub_u32 s8, s8, 1")
    w("    s_cmp_lg_u32 s8, 0")
    w("    s_cbranch_scc1 LB_loop")
    w("    v_lshlrev_b32 v5, 2, v0")
    ops = {20: "v_max_u32", 21: "v_min_u32", 22: "v_max_u32", 23: "v_min_u32", 24: "v_add_u32", 25: "v_max_u32", 26: "v_min_u32", 27: "v_add_u32"}
    for m in (1, 2, 4, 8, 16, 32):
        w(f"    v_xor_b32 v6, {m*4}, v5")
        for r, op in ops.items():
            w(f"    ds_bpermute_b32 v7, v6, v{r}")
            w("    s_waitcnt lgkmcnt(0)")
            w(f"    {op} v{r}, v{r}, v7")
        if m in (1, 16, 32):
            w("    ds_bpermute_b32 v7, v6, v28")
            w("    s_waitcnt lgkmcnt(0)")
            w("    v_add_u32 v28, v28, v7")
    w("    s_nop 1")
    for r in ops:
        w(f"    v_readfirstlane_b32 s{r+10}, v{r}")
    w("    s_nop 4")
    lg = nwaves.bit_length() - 1
    if kind == "span":
        w("    s_sub_u32 s9, s32, s31")
    elif kind == "first":
        w("    s_sub_u32 s9, s32, s30")
    elif kind == "mean":
        w(f"    s_lshr_b32 s9, s34, {lg}")
    elif kind == "maxd":
        w("    s_mov_b32 s9, s35")
    elif kind == "mind":
        w("    s_mov_b32 s9, s36")
    elif kind == "gap":
        w("    s_mov_b32 s9, s31")
    elif kind == "meanrel":
        w(f"    s_lshr_b32 s9, s37, {lg}")
        w("    s_sub_u32 s9, s32, s9")
    elif kind == "total":
        w("    s_mov_b32 s9, s32")
    elif kind == "const":
        w("    s_mov_b32 s9, 1000")
    elif kind.startswith("cls"):
        c = int(kind[3:])
        w(f"    v_readlane_b32 s9, v28, {2*c}")
        w(f"    v_readlane_b32 s12, v29, {2*c}")
        w("    s_nop 4")
        w(f"    s_lshr_b32 s9, s9, {lg-3}")
        w("    s_sub_u32 s9, s32, s9")
        w("    s_min_u32 s9, s9, 499")
        w("    s_mul_i32 s12, s12, 500")
        w("    s_add_u32 s9, s9, s12")
    elif kind == "zero":
        w("    s_mov_b32 s9, 0")
    w("    s_min_u32 s9, s9, 5000")
    w(f"    s_mul_i32 s10, s9, {K}")
    w("    s_memrealtime s[22:23]")
    w("    s_waitcnt lgkmcnt(0)")
    w("LB_spin:")
    w("    s_memrealtime s[24:25]")
    w("    s_waitcnt lgkmcnt(0)")
    w("    s_sub_u32 s11, s24, s22")
    w("    s_cmp_lt_u32 s11, s10")
    w("    s_cbranch_scc1 LB_spin")
    w("LB_end:")
    w("    s_endpgm")
    w('.section .rodata,"a"')
    w(".p2align 6")
    w(".amdhsa_kernel diagb_kernel")
    w("  .amdhsa_next_free_vgpr 32")
    w("  .amdhsa_next_free_sgpr 48")
    w("  .amdhsa_accum_offset 32")
    w("  .amdhsa_group_segment_fixed_size 0")
    w("  .amdhsa_kernarg_size 48")
    w("  .amdhsa_user_sgpr_count 2")
    w("  .amdhsa_user_sgpr_kernarg_segment_ptr 1")
    w("  .amdhsa_system_sgpr_workgroup_id_x 1")
    w(".end_amdhsa_kernel")
    return "\n".join(L) + "\n"

def make(asm, kind, a, b, K=100):
    m = re.search(r"; @launch grid=\((\d+),1,1\) block=\((\d+),1,1\) lds=(\d+)", asm)
    g, blk, lds = int(m.group(1)), int(m.group(2)), int(m.group(3))
    wpw = blk // 64
    nw = g * wpw
    s = stampify(asm, wpw.bit_length() - 1)
    if kind is None:
        return s
    s = s.replace(m.group(0), f"; @launch kernel=standalone__grn__sampling_kernel grid=({g},1,1) block=({blk},1,1) lds={lds}\n; @launch kernel=diagb_kernel grid=(1,1,1) block=(64,1,1) lds=0")
    return s + kernel_b(nw, kind, a, b, K)

if __name__ == "__main__":
    src, out, kind = sys.argv[1], sys.argv[2], sys.argv[3]
    if kind == "none":
        open(out, "w").write(make(open(src).read(), None, 0, 0))
    else:
        a, b = int(sys.argv[4]), int(sys.argv[5])
        open(out, "w").write(make(open(src).read(), kind, a, b))
```

```python
import re, sys

def stampify(asm, nwaves_per_wg_log2):
    asm0 = asm
    def rep(m):
        n = int(m.group(1))
        if n == 0 and "L_skip" in asm0:
            return "\n".join(f"    s_memrealtime s[{40+2*k}:{41+2*k}]" for k in range(5))
        return f"    s_memrealtime s[{40+2*n}:{41+2*n}]"
    asm = re.sub(r"^\s*;@STAMP (\d)\s*$", rep, asm, flags=re.M)
    fin = """
    s_waitcnt vmcnt(0)
    s_memrealtime s[52:53]
    s_load_dwordx2 s[56:57], s[0:1], 40
    s_getreg_b32 s54, hwreg(HW_REG_XCC_ID)
    s_getreg_b32 s55, hwreg(HW_REG_HW_ID)
    s_lshl_b32 s54, s54, 28
    s_and_b32 s55, s55, 0x0fffffff
    s_or_b32 s54, s54, s55
    v_readfirstlane_b32 s58, v0
    s_lshr_b32 s58, s58, 6
    s_lshl_b32 s59, s2, %d
    s_add_u32 s58, s58, s59
    s_lshl_b32 s58, s58, 5
    s_waitcnt lgkmcnt(0)
    s_mov_b64 exec, 1
    v_mov_b32 v8, s40
    v_mov_b32 v9, s42
    v_mov_b32 v10, s44
    v_mov_b32 v11, s46
    v_mov_b32 v12, s48
    v_mov_b32 v13, s50
    v_mov_b32 v14, s52
    v_mov_b32 v15, s54
    v_mov_b32 v16, s58
    global_store_dwordx4 v16, v[8:11], s[56:57]
    global_store_dwordx4 v16, v[12:15], s[56:57] offset:16
""" % nwaves_per_wg_log2
    asm = asm.replace("L_end:", fin + "L_end:", 1)
    asm = re.sub(r"\.amdhsa_next_free_sgpr \d+", ".amdhsa_next_free_sgpr 64", asm)
    return asm

def kernel_b(nwaves, kind, a, b, K=100):
    iters = (nwaves + 63) // 64
    L = []
    w = L.append
    w(".text")
    w(".globl diagb_kernel")
    w(".p2align 8")
    w(".type diagb_kernel,@function")
    w("diagb_kernel:")
    w("    s_memrealtime s[20:21]")
    w("    s_load_dwordx2 s[4:5], s[0:1], 40")
    w("    s_load_dwordx2 s[6:7], s[0:1], 32")
    w("    s_cmp_ge_u32 s2, 1")
    w("    s_cbranch_scc1 LB_end")
    w("    v_lshlrev_b32 v1, 5, v0")
    w("    v_mov_b32 v20, 0")
    w("    v_mov_b32 v21, -1")
    w("    v_mov_b32 v22, 0")
    w("    v_mov_b32 v23, -1")
    w("    v_mov_b32 v24, 0")
    w("    v_mov_b32 v25, 0")
    w("    v_mov_b32 v26, -1")
    w("    v_mov_b32 v27, 0")
    w("    v_mov_b32 v28, 0")
    w(f"    s_mov_b32 s8, {iters}")
    w("    s_waitcnt lgkmcnt(0)")
    w("LB_loop:")
    w("    global_load_dwordx4 v[8:11], v1, s[4:5]")
    w("    global_load_dwordx4 v[12:15], v1, s[4:5] offset:16")
    w("    v_add_u32 v1, 2048, v1")
    w("    s_waitcnt vmcnt(0)")
    w(f"    v_sub_u32 v2, s20, v{8+a}")
    w(f"    v_sub_u32 v3, s20, v{8+b}")
    w(f"    v_sub_u32 v4, v{8+a}, v{8+b}")
    w("    v_max_u32 v20, v20, v2")
    w("    v_min_u32 v21, v21, v2")
    w("    v_max_u32 v22, v22, v3")
    w("    v_min_u32 v23, v23, v3")
    w("    v_add_u32 v24, v24, v4")
    w("    v_max_u32 v25, v25, v4")
    w("    v_min_u32 v26, v26, v4")
    w("    v_add_u32 v27, v27, v2")
    w("    v_add_u32 v28, v28, v2")
    w("    v_lshrrev_b32 v29, 28, v15")
    w("    s_sub_u32 s8, s8, 1")
    w("    s_cmp_lg_u32 s8, 0")
    w("    s_cbranch_scc1 LB_loop")
    w("    v_lshlrev_b32 v5, 2, v0")
    ops = {20: "v_max_u32", 21: "v_min_u32", 22: "v_max_u32", 23: "v_min_u32", 24: "v_add_u32", 25: "v_max_u32", 26: "v_min_u32", 27: "v_add_u32"}
    for m in (1, 2, 4, 8, 16, 32):
        w(f"    v_xor_b32 v6, {m*4}, v5")
        for r, op in ops.items():
            w(f"    ds_bpermute_b32 v7, v6, v{r}")
            w("    s_waitcnt lgkmcnt(0)")
            w(f"    {op} v{r}, v{r}, v7")
        if m in (1, 16, 32):
            w("    ds_bpermute_b32 v7, v6, v28")
            w("    s_waitcnt lgkmcnt(0)")
            w("    v_add_u32 v28, v28, v7")
    w("    s_nop 1")
    for r in ops:
        w(f"    v_readfirstlane_b32 s{r+10}, v{r}")
    w("    s_nop 4")
    lg = nwaves.bit_length() - 1
    if kind == "span":
        w("    s_sub_u32 s9, s32, s31")
    elif kind == "first":
        w("    s_sub_u32 s9, s32, s30")
    elif kind == "mean":
        w(f"    s_lshr_b32 s9, s34, {lg}")
    elif kind == "maxd":
        w("    s_mov_b32 s9, s35")
    elif kind == "mind":
        w("    s_mov_b32 s9, s36")
    elif kind == "gap":
        w("    s_mov_b32 s9, s31")
    elif kind == "meanrel":
        w(f"    s_lshr_b32 s9, s37, {lg}")
        w("    s_sub_u32 s9, s32, s9")
    elif kind == "total":
        w("    s_mov_b32 s9, s32")
    elif kind == "const":
        w("    s_mov_b32 s9, 1000")
    elif kind.startswith("cls"):
        c = int(kind[3:])
        w(f"    v_readlane_b32 s9, v28, {2*c}")
        w(f"    v_readlane_b32 s12, v29, {2*c}")
        w("    s_nop 4")
        w(f"    s_lshr_b32 s9, s9, {lg-3}")
        w("    s_sub_u32 s9, s32, s9")
        w("    s_min_u32 s9, s9, 499")
        w("    s_mul_i32 s12, s12, 500")
        w("    s_add_u32 s9, s9, s12")
    elif kind == "pre":
        w("    s_load_dword s12, s[4:5], 0xf0000")
        w("    s_waitcnt lgkmcnt(0)")
        w("    s_sub_u32 s9, s20, s32")
        w("    s_sub_u32 s9, s9, s12")
    elif kind == "full":
        w("    s_load_dword s12, s[4:5], 0xf0000")
        w("    s_waitcnt lgkmcnt(0)")
        w("    s_sub_u32 s9, s20, s12")
    elif kind == "zero":
        w("    s_mov_b32 s9, 0")
    w("    s_min_u32 s9, s9, 5000")
    w(f"    s_mul_i32 s10, s9, {K}")
    w("    s_memrealtime s[22:23]")
    w("    s_waitcnt lgkmcnt(0)")
    w("LB_spin:")
    w("    s_memrealtime s[24:25]")
    w("    s_waitcnt lgkmcnt(0)")
    w("    s_sub_u32 s11, s24, s22")
    w("    s_cmp_lt_u32 s11, s10")
    w("    s_cbranch_scc1 LB_spin")
    w("LB_end:")
    w("    s_endpgm")
    w('.section .rodata,"a"')
    w(".p2align 6")
    w(".amdhsa_kernel diagb_kernel")
    w("  .amdhsa_next_free_vgpr 32")
    w("  .amdhsa_next_free_sgpr 48")
    w("  .amdhsa_accum_offset 32")
    w("  .amdhsa_group_segment_fixed_size 0")
    w("  .amdhsa_kernarg_size 48")
    w("  .amdhsa_user_sgpr_count 2")
    w("  .amdhsa_user_sgpr_kernarg_segment_ptr 1")
    w("  .amdhsa_system_sgpr_workgroup_id_x 1")
    w(".end_amdhsa_kernel")
    return "\n".join(L) + "\n"

def make(asm, kind, a, b, K=100):
    m = re.search(r"; @launch grid=\((\d+),1,1\) block=\((\d+),1,1\) lds=(\d+)", asm)
    g, blk, lds = int(m.group(1)), int(m.group(2)), int(m.group(3))
    wpw = blk // 64
    nw = g * wpw
    s = stampify(asm, wpw.bit_length() - 1) if kind != "full" else asm
    if kind is None:
        return s
    s = s.replace(m.group(0), f"; @launch kernel=standalone__grn__sampling_kernel grid=({g},1,1) block=({blk},1,1) lds={lds}\n; @launch kernel=diagb_kernel grid=(1,1,1) block=(64,1,1) lds=0")
    extra = ""
    if kind in ("pre", "full"):
        s = s.replace("; @launch kernel=standalone", "; @launch kernel=diagp_kernel grid=(1,1,1) block=(64,1,1) lds=0\n; @launch kernel=standalone", 1)
        extra = """.text
.globl diagp_kernel
.p2align 8
.type diagp_kernel,@function
diagp_kernel:
    s_load_dwordx2 s[4:5], s[0:1], 40
    s_cmp_ge_u32 s2, 1
    s_cbranch_scc1 LP_end
    s_waitcnt lgkmcnt(0)
    s_memrealtime s[6:7]
    v_mov_b32 v1, 0xf0000
    s_waitcnt lgkmcnt(0)
    v_mov_b32 v2, s6
    global_store_dword v1, v2, s[4:5]
LP_end:
    s_endpgm
.section .rodata,"a"
.p2align 6
.amdhsa_kernel diagp_kernel
  .amdhsa_next_free_vgpr 8
  .amdhsa_next_free_sgpr 16
  .amdhsa_accum_offset 8
  .amdhsa_group_segment_fixed_size 0
  .amdhsa_kernarg_size 48
  .amdhsa_user_sgpr_count 2
  .amdhsa_user_sgpr_kernarg_segment_ptr 1
  .amdhsa_system_sgpr_workgroup_id_x 1
.end_amdhsa_kernel
"""
    return s + kernel_b(nw, kind, a, b, K) + extra

if __name__ == "__main__":
    src, out, kind = sys.argv[1], sys.argv[2], sys.argv[3]
    if kind == "none":
        open(out, "w").write(make(open(src).read(), None, 0, 0))
    else:
        a, b = int(sys.argv[4]), int(sys.argv[5])
        open(out, "w").write(make(open(src).read(), kind, a, b))
```
